```python
import torch

def _softmax(x, axis=-1):
    return torch.softmax(x, dim=axis)
def _gelu(x):
    return torch.nn.functional.gelu(x, approximate="tanh")
def _silu(x):
    return torch.nn.functional.silu(x)
def _sigmoid(x):
    return torch.sigmoid(x)
def _layernorm(x, axis=-1, eps=1e-5):
    m = x.mean(dim=axis, keepdim=True)
    v = x.var(dim=axis, keepdim=True, unbiased=False)
    return (x - m) / torch.sqrt(v + eps)
def _scatter_add(tgt, idx, src, axis=0):
    return tgt.clone().index_add_(axis, idx, src)
def _segment_sum(src, seg, n):
    out = torch.zeros((n,) + src.shape[1:], dtype=src.dtype)
    return out.index_add_(0, seg, src)
def _pad(x, pw):
    flat = tuple(v for pair in reversed(pw) for v in pair)
    return torch.nn.functional.pad(x, flat)

kernel_name = 'standalone__cross_network_dcn_v2__recsys'

def setup_inputs():

    _w = (lambda a: (lambda t: t.to(torch.bfloat16) if t.is_floating_point() else t)(torch.as_tensor(a)))
    B, F, D, L = 16384, 100, 32, 6
    Din = min(F * D, 512)
    R = max(Din // 4, 2)
    sc = Din ** -0.5
    return {
        "x0": _w((lambda *s: torch.randn(*s, dtype=torch.bfloat16) * 0.05)(B, Din)),
        "U":  _w((lambda *s: torch.randn(*s, dtype=torch.bfloat16) * 1.6)(L, Din, R) * sc),
        "V":  _w((lambda *s: torch.randn(*s, dtype=torch.bfloat16) * 1.6)(L, R, Din) * sc),
        "bs": _w((lambda *s: torch.randn(*s, dtype=torch.bfloat16) * 0.05)(L, Din)),
    }

def reference(x0, U, V, bs):
    x = x0
    for l in range(U.shape[0]):
        h = torch.einsum('rd,bd->br', V[l], x)
        h = torch.einsum('dr,br->bd', U[l], h)
        x = x0 * (h + bs[l]) + x
    return x
```

```python
import sys

NAME = "standalone__cross_network_dcn_v2__recsys"

ACC2 = 0
ACC1 = 128
BRING = 160
NRING = 8
X0F = 192
EWT = 200
XOUT = 216
BIAS = 224
RA = 236
WA = 240
H1R = 244
H1W = 245
WOFF = 246
BADDR = 247
VO0 = 248
VO1 = 249
TMP = 250

LDS_H1 = 131072
LDS_BIAS = 147456
LDS_TOTAL = 147456 + 8192

S_W = 4
S_X = 8
S_O = 12
S_B = 16
S_WOFF = 20
S_LAYER = 21
S_MASK = 22
S_XD = 23
S_WAVE = 24
S_ROW = 25
S_T0 = 26
S_T1 = 27
S_LDSW = 28

D_PRE = 6

class G:
    def __init__(self):
        self.L = []
        self.lds = []
        self.vm = []
        self.n = 0
        self.mw = {}
    def raw(self, s, states=1):
        self.L.append("    " + s)
        self.n += states
    def label(self, s):
        self.L.append(s + ":")
    def comment(self, s):
        self.L.append("    ; " + s)
    def ds(self, s, tok):
        self.raw(s)
        self.lds.append(tok)
    def vmem(self, s, tok):
        if len(self.vm) >= 63:
            keep = 62
            self.raw("s_waitcnt vmcnt(%d)" % keep)
            self.vm = self.vm[-keep:]
        self.raw(s)
        self.vm.append(tok)
    def need(self, lds=(), vm=()):
        parts = []
        if vm:
            idx = max((self.vm.index(t) for t in vm if t in self.vm), default=-1)
            if idx >= 0:
                n = len(self.vm) - 1 - idx
                parts.append("vmcnt(%d)" % n)
                self.vm = self.vm[idx + 1:]
        if lds:
            idx = max((self.lds.index(t) for t in lds if t in self.lds), default=-1)
            if idx >= 0:
                n = len(self.lds) - 1 - idx
                if n > 15:
                    n = 15
                    idx = len(self.lds) - 1 - 15
                parts.append("lgkmcnt(%d)" % n)
                self.lds = self.lds[idx + 1:]
        if parts:
            self.raw("s_waitcnt " + " ".join(parts))
    def lds_all(self):
        if self.lds:
            self.raw("s_waitcnt lgkmcnt(0)")
            self.lds = []
    def mfma(self, d, a, b, c=None):
        cs = "v[%d:%d]" % (d, d + 15) if c is None else c
        self.raw("v_mfma_f32_32x32x16_bf16 v[%d:%d], %s, %s, %s" % (d, d + 15, a, b, cs))
        self.mw[d] = self.n
    def valu_reads_acc(self, d):
        if d in self.mw:
            dist = self.n - self.mw[d]
            if dist < 12:
                k = 12 - dist
                self.raw("s_nop %d" % (k - 1), states=k)

def vr(b, n=4):
    return "v[%d:%d]" % (b, b + n - 1)
def ar(b, n=4):
    return "a[%d:%d]" % (b, b + n - 1)

def acc2(n, T):
    return ACC2 + (n * 4 + T) * 16
def acc1(n):
    return ACC1 + n * 16
def ring(i):
    return BRING + (i % NRING) * 4

def rd_x(g, ks, i, tokname):
    return lambda: g.ds("ds_read_b128 %s, v%d offset:%d" % (vr(ring(i)), RA + (ks & 3), (ks >> 2) * 8192), (tokname, ks))

def rd_h1(g, n, ks, i, tokname):
    return lambda: g.ds("ds_read_b128 %s, v%d offset:%d" % (vr(ring(i)), H1R, n * 8192 + ks * 1024), (tokname, ks))

def ew_stream(g, n):
    S = []
    def x0rd(u):
        T, c = u >> 1, u & 1
        q = 2 * (T & 1) + c
        return lambda: g.ds("ds_read_b128 %s, v%d offset:%d" % (vr(X0F + (u & 1) * 4), WA + q, (T >> 1) * 8192 + 4096), ("x0", u))
    S.append(x0rd(0)); S.append(x0rd(1))
    for u in range(8):
        T, c = u >> 1, u & 1
        q = 2 * (T & 1) + c
        X = X0F + (u & 1) * 4
        t = EWT + (u & 1) * 8
        o = XOUT + (u & 1) * 4
        A = acc2(n, T) + 8 * c
        for j in range(4):
            def f(j=j, X=X, t=t, u=u):
                g.need(lds=[("x0", u)])
                g.raw("v_lshlrev_b32 v%d, 16, v%d" % (t + 2 * j, X + j))
            S.append(f)
            S.append(lambda j=j, X=X, t=t: g.raw("v_and_b32 v%d, s%d, v%d" % (t + 2 * j + 1, S_MASK, X + j)))
        if u + 2 < 8:
            S.append(x0rd(u + 2))
        for i in range(8):
            def f(i=i, t=t, A=A, T=T):
                g.valu_reads_acc(acc2(n, T))
                g.raw("v_mul_f32 v%d, v%d, v%d" % (t + i, t + i, A + i))
            S.append(f)
        for j in range(4):
            S.append(lambda j=j, t=t, o=o: g.raw("v_cvt_pk_bf16_f32 v%d, v%d, v%d" % (o + j, t + 2 * j, t + 2 * j + 1)))
        S.append(lambda o=o, q=q, T=T, u=u: g.ds("ds_write_b128 v%d, %s offset:%d" % (WA + q, vr(o), (T >> 1) * 8192), ("xw", u)))
    return S

def h1_stream(g, n):
    S = []
    for c in range(2):
        for j in range(4):
            def f(c=c, j=j):
                g.valu_reads_acc(acc1(n))
                g.raw("v_cvt_pk_bf16_f32 v%d, v%d, v%d" % (EWT + c * 4 + j, acc1(n) + 8 * c + 2 * j, acc1(n) + 8 * c + 2 * j + 1))
            S.append(f)
        S.append(lambda c=c: g.ds("ds_write_b128 v%d, %s offset:%d" % (H1W, vr(EWT + c * 4), n * 8192 + c * 1024), ("h1w", c)))
    return S

def spread(fill, stream, s0, s1):
    ns = s1 - s0 + 1
    n = len(stream)
    for i, f in enumerate(stream):
        fill[s0 + (i * ns) // n].append(f)

def wload(g, f, tokname):
    def go():
        g.vmem("buffer_load_dwordx4 %s, v%d, s[%d:%d], s%d offen offset:%d" % (ar(f * 4), WOFF, S_W, S_W + 3, S_WOFF, (f & 3) * 1024), (tokname, f))
        if (f & 3) == 3:
            g.raw("s_add_u32 s%d, s%d, 4096" % (S_WOFF, S_WOFF))
    return go

def barrier(g):
    def go():
        g.lds_all()
        g.raw("s_barrier")
    return go

def phase_g1(g, n, first=False):
    NS = 32
    fill = [[] for _ in range(NS)]
    tok = "xb%d" % n
    base = 0
    for j in range(NS - D_PRE):
        fill[j].append(rd_x(g, j + D_PRE, base + j + D_PRE, tok))
    if n == 0:
        if not first:
            spread(fill, ew_stream(g, 1), 1, 24)
        else:
            for i, f in enumerate(range(23, 32)):
                fill[2 * i].append(lambda f=f: prologue_uload(g, f))
        def tail():
            if first:
                g.need(vm=[("x0n1", 7)])
            barrier(g)()
            for q in range(4):
                g.raw("v_xor_b32 v%d, 0x10000, v%d" % (RA + q, RA + q))
            for q in range(4):
                g.raw("v_xor_b32 v%d, 0x10000, v%d" % (WA + q, WA + q))
        fill[NS - D_PRE].append(tail)
        for j in range(D_PRE):
            fill[NS - D_PRE + j].append(rd_x(g, j, j, "xb1"))
    else:
        spread(fill, h1_stream(g, 0), 1, 4)
        fill[8].append(barrier(g))
        def biasrd():
            for T in range(4):
                g.ds("ds_read_u16 v%d, v%d offset:%d" % (BIAS + 2 * T, BADDR, 64 * T), ("bias", T))
            g.raw("v_add_u32 v%d, 1024, v%d" % (BADDR, BADDR))
        fill[10].append(biasrd)
        def tail():
            for q in range(4):
                g.raw("v_xor_b32 v%d, 0x10000, v%d" % (RA + q, RA + q))
            for q in range(4):
                g.raw("v_subrev_u32 v%d, s%d, v%d" % (RA + q, S_XD, RA + q))
            g.raw("s_mov_b32 s%d, 0" % S_XD)
        fill[NS - D_PRE].append(tail)
        for i in range(3):
            fill[28 + i].append(rd_h1(g, 0, i, i, "hb0"))
    for j in range(NS):
        vm = []
        if n == 0 and (j % 2) == 0:
            vm = [("V", j + 1)]
        lds = [(tok, j + (1 if j % 2 == 0 else 0))]
        g.need(lds=lds, vm=vm)
        g.mfma(acc1(n), ar(j * 4), vr(ring(base + j)), "0" if j == 0 else None)
        if n == 1:
            wload(g, j, "V")()
        for f in fill[j]:
            f()

def phase_g2(g, n):
    NS = 36
    fill = [[] for _ in range(NS)]
    tok = "hb%d" % n
    for ks in range(8 - 3):
        fill[4 + 4 * ks].append(rd_h1(g, n, ks + 3, ks + 3, tok))
    if n == 0:
        spread(fill, h1_stream(g, 1), 1, 4)
        fill[10].append(barrier(g))
        for i in range(3):
            fill[32 + i].append(rd_h1(g, 1, i, i, "hb1"))
    else:
        spread(fill, ew_stream(g, 0), 1, 28)
        def tail():
            barrier(g)()
            for q in range(4):
                g.raw("v_xor_b32 v%d, 0x10000, v%d" % (WA + q, WA + q))
            g.raw("s_add_u32 s%d, s%d, 1" % (S_LAYER, S_LAYER))
        fill[NS - D_PRE].append(tail)
        for j in range(D_PRE):
            fill[NS - D_PRE + j].append(rd_x(g, j, j, "xb0"))
    for s in range(NS):
        if s < 4:
            T = s
            if s == 0:
                g.need(lds=[("bias", 3)])
            A = BIAS + 2 * T
            B = BIAS + 8
            g.mfma(acc2(n, T), vr(A), vr(B))
        else:
            ks, T = (s - 4) >> 2, (s - 4) & 3
            f = 32 + ks * 4 + T
            vm = []
            if n == 0 and (T % 2) == 0:
                vm = [("U", f + 1)]
            g.need(lds=[(tok, ks)], vm=vm)
            g.mfma(acc2(n, T), ar(f * 4), vr(ring(ks)))
            if n == 1:
                wload(g, f, "U")()
                if f == 63:
                    g.raw("s_add_u32 s%d, s%d, %d" % (S_WOFF, S_WOFF, 3 * 65536))
        for fn in fill[s]:
            fn()

def prologue_uload(g, f32):
    wload(g, 32 + f32, "U")()
    if f32 == 31:
        g.raw("s_add_u32 s%d, s%d, %d" % (S_WOFF, S_WOFF, 3 * 65536))

def srd(g, s, lo, nbytes):
    g.raw("s_mov_b32 s%d, s%d" % (s, lo))
    g.raw("s_and_b32 s%d, s%d, 0xffff" % (s + 1, lo + 1))
    g.raw("s_mov_b32 s%d, %d" % (s + 2, nbytes))
    g.raw("s_mov_b32 s%d, 0x00020000" % (s + 3))

def x0_dma(g, n):
    k = 0
    for sg in range(2):
        for rg in range(4):
            g.raw("s_add_u32 s%d, s%d, %d" % (S_T0, S_LDSW, n * 65536 + sg * 8192 + 4096 + rg * 1024))
            g.raw("s_mov_b32 m0, s%d" % S_T0)
            g.raw("s_add_u32 s%d, s%d, %d" % (S_T1, S_ROW, n * 32768 + rg * 8192 + sg * 128))
            g.vmem("buffer_load_dwordx4 v%d, s[%d:%d], s%d offen lds" % (VO0 + (rg >> 1), S_X, S_X + 3, S_T1), ("x0n%d" % n, k))
            k += 1

def main_kernel(g):
    K = NAME + "_kernel"
    g.L.append(".globl %s\n.p2align 8\n.type %s,@function" % (K, K))
    g.label(K)
    g.raw("s_cmp_ge_u32 s2, 256")
    g.raw("s_cbranch_scc1 L_done")
    g.raw("s_load_dwordx2 s[32:33], s[0:1], 0")
    g.raw("s_load_dwordx2 s[34:35], s[0:1], 24")
    g.raw("s_load_dwordx2 s[36:37], s[0:1], 32")
    g.raw("s_load_dwordx2 s[38:39], s[0:1], 48")
    T0, T1, T2, T3, T4, T5 = range(TMP, TMP + 6)
    g.raw("v_lshrrev_b32 v%d, 6, v0" % T0)
    g.raw("v_and_b32 v%d, 63, v0" % T1)
    g.raw("v_readfirstlane_b32 s%d, v%d" % (S_WAVE, T0))
    g.raw("v_lshlrev_b32 v%d, 4, v%d" % (WOFF, T1))
    g.raw("v_lshrrev_b32 v%d, 3, v%d" % (T2, T1))
    g.raw("v_lshrrev_b32 v%d, 4, v%d" % (T3, T1))
    g.raw("v_and_b32 v%d, 1, v%d" % (T4, T2))
    g.raw("v_lshlrev_b32 v%d, 2, v%d" % (T4, T4))
    g.raw("v_or_b32 v%d, v%d, v%d" % (T3, T3, T4))
    g.raw("v_and_b32 v%d, 7, v%d" % (T4, T1))
    g.raw("v_xor_b32 v%d, v%d, v%d" % (T3, T3, T4))
    g.raw("v_lshlrev_b32 v%d, 4, v%d" % (T3, T3))
    g.raw("v_lshlrev_b32 v%d, 10, v%d" % (T2, T2))
    g.raw("v_add_u32 v%d, v%d, v%d" % (VO0, T2, T3))
    g.raw("v_xor_b32 v%d, 64, v%d" % (VO1, VO0))
    g.raw("s_lshl_b32 s%d, s2, 16" % S_ROW)
    g.raw("s_lshl_b32 s%d, s%d, 8" % (S_T0, S_WAVE))
    g.raw("s_add_u32 s%d, s%d, s%d" % (S_ROW, S_ROW, S_T0))
    g.raw("s_lshl_b32 s%d, s%d, 14" % (S_LDSW, S_WAVE))
    g.raw("s_lshl_b32 s%d, s%d, 16" % (S_WOFF, S_WAVE))
    g.raw("s_waitcnt lgkmcnt(0)")
    srd(g, S_X, 32, 16384 * 1024)
    srd(g, S_B, 34, 6 * 1024)
    srd(g, S_O, 36, 16384 * 1024)
    srd(g, S_W, 38, 6 * 4 * 65536)
    x0_dma(g, 0)
    for i in range(2):
        g.raw("s_lshl_b32 s%d, s%d, 11" % (S_T1, S_WAVE))
        g.raw("s_add_u32 s%d, s%d, %d" % (S_T1, S_T1, i * 1024))
        g.raw("s_add_u32 s%d, s%d, %d" % (S_T0, S_T1, LDS_BIAS))
        g.raw("s_mov_b32 m0, s%d" % S_T0)
        g.raw("s_nop 0")
        g.vmem("buffer_load_dwordx4 v%d, s[%d:%d], s%d offen lds" % (WOFF, S_B, S_B + 3, S_T1), ("biasdma", i))
    for f in range(32):
        wload(g, f, "V")()
    x0_dma(g, 1)
    for f in range(13):
        prologue_uload(g, f)
    g.raw("v_and_b32 v%d, 31, v%d" % (T0, T1))
    g.raw("v_lshrrev_b32 v%d, 5, v%d" % (T2, T1))
    g.raw("v_lshrrev_b32 v%d, 1, v%d" % (T3, T0))
    g.raw("v_and_b32 v%d, 3, v%d" % (T3, T3))
    g.raw("v_lshrrev_b32 v%d, 4, v%d" % (T4, T0))
    g.raw("v_xor_b32 v%d, v%d, v%d" % (T4, T4, T0))
    g.raw("v_and_b32 v%d, 1, v%d" % (T4, T4))
    g.raw("v_lshlrev_b32 v%d, 2, v%d" % (T4, T4))
    g.raw("v_or_b32 v%d, v%d, v%d" % (T3, T3, T4))
    g.raw("v_xor_b32 v%d, v%d, v%d" % (T3, T3, T2))
    g.raw("v_lshlrev_b32 v%d, 7, v%d" % (T4, T0))
    for q in range(4):
        g.raw("v_xor_b32 v%d, %d, v%d" % (T5, 2 * q, T3))
        g.raw("v_lshlrev_b32 v%d, 4, v%d" % (T5, T5))
        g.raw("v_add_u32 v%d, v%d, v%d" % (T5, T5, T4))
        g.raw("v_add_u32 v%d, 4096, v%d" % (RA + q, T5))
        g.raw("v_add_u32 v%d, s%d, v%d" % (WA + q, S_LDSW, T5))
        g.raw("v_add_u32 v%d, 0x10000, v%d" % (WA + q, WA + q))
    g.raw("v_add_u32 v%d, %d, v%d" % (H1R, LDS_H1, WOFF))
    g.raw("s_lshl_b32 s%d, s%d, 11" % (S_T0, S_WAVE))
    g.raw("v_add_u32 v%d, s%d, v%d" % (H1W, S_T0, H1R))
    g.raw("v_and_b32 v%d, 19, v%d" % (T3, T0))
    g.raw("v_and_b32 v%d, 4, v%d" % (T4, T0))
    g.raw("v_lshlrev_b32 v%d, 1, v%d" % (T4, T4))
    g.raw("v_or_b32 v%d, v%d, v%d" % (T3, T3, T4))
    g.raw("v_and_b32 v%d, 8, v%d" % (T4, T0))
    g.raw("v_lshrrev_b32 v%d, 1, v%d" % (T4, T4))
    g.raw("v_or_b32 v%d, v%d, v%d" % (T3, T3, T4))
    g.raw("v_lshlrev_b32 v%d, 1, v%d" % (T3, T3))
    g.raw("s_lshl_b32 s%d, s%d, 8" % (S_T0, S_WAVE))
    g.raw("s_add_u32 s%d, s%d, %d" % (S_T0, S_T0, LDS_BIAS))
    g.raw("v_add_u32 v%d, s%d, v%d" % (BADDR, S_T0, T3))
    for i in range(12):
        g.raw("v_mov_b32 v%d, 0" % (BIAS + i))
    g.raw("v_cmp_gt_u32 vcc, 32, v%d" % T1)
    g.raw("v_mov_b32 v%d, 0x3f80" % T3)
    g.raw("v_mov_b32 v%d, 0x3f800000" % T4)
    g.raw("s_nop 1")
    g.raw("v_cndmask_b32 v%d, 0, v%d, vcc" % (BIAS + 8, T3))
    g.raw("s_mov_b32 s%d, 0xffff0000" % S_MASK)
    g.raw("s_mov_b32 s%d, 4096" % S_XD)
    g.raw("s_mov_b32 s%d, 0" % S_LAYER)
    for i in range(128):
        g.raw("v_mov_b32 v%d, 1.0" % (ACC2 + i))
    g.need(vm=[("biasdma", 1)])
    for f in range(13, 23):
        prologue_uload(g, f)
    g.raw("s_barrier")
    for j in range(D_PRE):
        rd_x(g, j, j, "xb0")()
    phase_g1(g, 0, first=True)
    st_lds, st_vm = list(g.lds), list(g.vm)
    g.label("L_loop")
    g.mw[acc1(0)] = g.n
    phase_g1(g, 1)
    phase_g2(g, 0)
    phase_g2(g, 1)
    g.raw("s_cmp_eq_u32 s%d, 6" % S_LAYER)
    g.raw("s_cbranch_scc1 L_epi")
    sv = (list(g.lds), list(g.vm), g.n, dict(g.mw))
    phase_g1(g, 0)
    assert g.lds == st_lds, (g.lds, st_lds)
    assert g.vm == st_vm, (g.vm, st_vm)
    g.raw("s_branch L_loop")
    g.label("L_epi")
    g.lds, g.vm, g.n, g.mw = sv
    g.raw("v_add_u32 v%d, s%d, v%d" % (T0, S_LDSW, WOFF))
    g.raw("v_add_u32 v%d, 0x10000, v%d" % (T1, T0))
    g.lds_all()
    def out_stream(n):
        S = []
        k = 0
        for sg in range(2):
            for rg in range(4):
                r = ring(k)
                S.append(lambda r=r, sg=sg, rg=rg, k=k: g.ds("ds_read_b128 %s, v%d offset:%d" % (vr(r), T0 + n, sg * 8192 + rg * 1024), ("o", k)))
                k += 1
        k = 0
        for sg in range(2):
            for rg in range(4):
                r = ring(k)
                def f(r=r, sg=sg, rg=rg, k=k):
                    g.raw("s_add_u32 s%d, s%d, %d" % (S_T1, S_ROW, n * 32768 + rg * 8192 + sg * 128))
                    g.need(lds=[("o", k)])
                    g.raw("buffer_store_dwordx4 %s, v%d, s[%d:%d], s%d offen" % (vr(r), VO0 + (rg >> 1), S_O, S_O + 3, S_T1))
                S.append(f)
                k += 1
        return S
    for f in out_stream(0):
        f()
    for f in ew_stream(g, 1):
        f()
    g.lds_all()
    g.raw("s_waitcnt vmcnt(0)")
    for f in out_stream(1):
        f()
    g.label("L_done")
    g.raw("s_endpgm")

def pre_kernel(g):
    K = "dcn_pre_kernel"
    g.L.append(".globl %s\n.p2align 8\n.type %s,@function" % (K, K))
    g.label(K)
    g.raw("s_cmp_ge_u32 s2, 384")
    g.raw("s_cbranch_scc1 L_pdone")
    g.raw("s_load_dwordx2 s[32:33], s[0:1], 8")
    g.raw("s_load_dwordx2 s[34:35], s[0:1], 16")
    g.raw("s_load_dwordx2 s[38:39], s[0:1], 48")
    g.raw("v_lshrrev_b32 v1, 6, v0")
    g.raw("v_and_b32 v2, 63, v0")
    g.raw("v_readfirstlane_b32 s24, v1")
    g.raw("v_and_b32 v3, 31, v2")
    g.raw("v_lshrrev_b32 v4, 5, v2")
    g.raw("v_and_b32 v5, 19, v3")
    g.raw("v_and_b32 v6, 4, v3")
    g.raw("v_lshlrev_b32 v6, 1, v6")
    g.raw("v_or_b32 v5, v5, v6")
    g.raw("v_and_b32 v6, 8, v3")
    g.raw("v_lshrrev_b32 v6, 1, v6")
    g.raw("v_or_b32 v5, v5, v6")
    g.raw("v_lshlrev_b32 v4, 4, v4")
    g.raw("v_lshlrev_b32 v7, 4, v2")
    g.raw("s_lshl_b32 s25, s2, 2")
    g.raw("s_add_u32 s25, s25, s24")
    g.raw("s_lshr_b32 s26, s25, 8")
    g.raw("s_lshr_b32 s27, s25, 6")
    g.raw("s_and_b32 s27, s27, 3")
    g.raw("s_and_b32 s28, s25, 63")
    g.raw("s_lshl_b32 s29, s26, 17")
    g.raw("s_lshl_b32 s30, s27, 15")
    g.raw("s_add_u32 s29, s29, s30")
    g.raw("s_lshl_b32 s31, s25, 10")
    g.raw("s_waitcnt lgkmcnt(0)")
    srd(g, 4, 32, 6 * 131072)
    srd(g, 8, 34, 6 * 131072)
    srd(g, 12, 38, 6 * 4 * 65536)
    g.raw("s_cmp_ge_u32 s28, 32")
    g.raw("s_cbranch_scc1 L_pu")
    g.raw("v_lshlrev_b32 v5, 10, v5")
    g.raw("v_add_u32 v5, v5, v4")
    g.raw("s_lshl_b32 s30, s28, 5")
    g.raw("s_add_u32 s29, s29, s30")
    g.raw("buffer_load_dwordx4 v[8:11], v5, s[8:11], s29 offen")
    g.raw("s_branch L_pst")
    g.label("L_pu")
    g.raw("v_lshlrev_b32 v5, 8, v5")
    g.raw("v_add_u32 v5, v5, v4")
    g.raw("s_and_b32 s30, s28, 3")
    g.raw("s_lshl_b32 s30, s30, 13")
    g.raw("s_add_u32 s29, s29, s30")
    g.raw("s_sub_u32 s30, s28, 32")
    g.raw("s_lshr_b32 s30, s30, 2")
    g.raw("s_lshl_b32 s30, s30, 5")
    g.raw("s_add_u32 s29, s29, s30")
    g.raw("buffer_load_dwordx4 v[8:11], v5, s[4:7], s29 offen")
    g.label("L_pst")
    g.raw("s_waitcnt vmcnt(0)")
    g.raw("buffer_store_dwordx4 v[8:11], v7, s[12:15], s31 offen")
    g.label("L_pdone")
    g.raw("s_endpgm")

HEADER = """; DCN-v2 low-rank cross network, gfx950. Generated by gen/gen.py
; @launch kernel=dcn_pre_kernel grid=(384,1,1) block=(256,1,1) lds=0
; @launch kernel=%s_kernel grid=(256,1,1) block=(256,1,1) lds=%d
.amdgcn_target "amdgcn-amd-amdhsa--gfx950"
.text
""" % (NAME, LDS_TOTAL)

def kd(name, vgpr, accum, sgpr):
    return """.p2align 6
.amdhsa_kernel %s
  .amdhsa_next_free_vgpr %d
  .amdhsa_next_free_sgpr %d
  .amdhsa_accum_offset %d
  .amdhsa_group_segment_fixed_size 0
  .amdhsa_kernarg_size 56
  .amdhsa_user_sgpr_count 2
  .amdhsa_user_sgpr_kernarg_segment_ptr 1
  .amdhsa_system_sgpr_workgroup_id_x 1
.end_amdhsa_kernel
""" % (name, vgpr, sgpr, accum)

if __name__ == "__main__":
    g = G()
    main_kernel(g)
    pre_kernel(g)
    out = HEADER + "\n".join(g.L) + "\n" + '.section .rodata,"a"\n' + kd(NAME + "_kernel", 512, 256, 48) + kd("dcn_pre_kernel", 16, 16, 48)
    path = sys.argv[1] if len(sys.argv) > 1 else "cdna_kernels/%s.s" % NAME
    open(path, "w").write(out)
    print("wrote", path, len(g.L), "lines")
```
